```python
import torch

def _softmax(x, axis=-1):
    return torch.softmax(x, dim=axis)
def _gelu(x):
    return torch.nn.functional.gelu(x, approximate="tanh")
def _silu(x):
    return torch.nn.functional.silu(x)
def _sigmoid(x):
    return torch.sigmoid(x)
def _layernorm(x, axis=-1, eps=1e-5):
    m = x.mean(dim=axis, keepdim=True)
    v = x.var(dim=axis, keepdim=True, unbiased=False)
    return (x - m) / torch.sqrt(v + eps)
def _scatter_add(tgt, idx, src, axis=0):
    return tgt.clone().index_add_(axis, idx, src)
def _segment_sum(src, seg, n):
    out = torch.zeros((n,) + src.shape[1:], dtype=src.dtype)
    return out.index_add_(0, seg, src)
def _pad(x, pw):
    flat = tuple(v for pair in reversed(pw) for v in pair)
    return torch.nn.functional.pad(x, flat)

kernel_name = 'parallel_sum__ssm_conv_s4__dense_activation_silu__prompt'

def setup_inputs():

    _w = (lambda a: (lambda t: t.to(torch.bfloat16) if t.is_floating_point() else t)(torch.as_tensor(a)))
    def _A_setup():
        B, L, D, N = 1, 2048, 512, 128
        A_re = -(lambda _x: torch.exp(torch.as_tensor(_x)))((lambda *s: torch.randn(*s, dtype=torch.bfloat16) * 6.4)(D, N))
        A_im = torch.pi * (lambda *s: torch.randn(*s, dtype=torch.bfloat16) * 0.05)(D, N)
        B_re = (lambda *s: torch.randn(*s, dtype=torch.bfloat16) * 0.1)(D, N)
        B_im = (lambda *s: torch.randn(*s, dtype=torch.bfloat16) * 0.1)(D, N)
        C_re = (lambda *s: torch.randn(*s, dtype=torch.bfloat16) * 0.1)(D, N)
        C_im = (lambda *s: torch.randn(*s, dtype=torch.bfloat16) * 0.1)(D, N)
        log_dt = (lambda *s: torch.randn(*s, dtype=torch.bfloat16) * 0.05)(D) * 0.5 - 4.0
        Dskip = (lambda *s: torch.randn(*s, dtype=torch.bfloat16) * 0.05)(D)
        return {
            "u": _w((lambda *s: torch.randn(*s, dtype=torch.bfloat16) * 0.05)(B, L, D)),
            "A_re": _w(A_re),
            "A_im": _w(A_im),
            "B_re": _w(B_re),
            "B_im": _w(B_im),
            "C_re": _w(C_re),
            "C_im": _w(C_im),
            "log_dt": _w(log_dt),
            "Dskip": _w(Dskip),
        }
    _A_in = _A_setup()

    def _B_setup():
        B, S, D, F = 1, 2048, 512, 1376
        return {
            "x": _w((lambda *s: torch.randn(*s, dtype=torch.bfloat16) * 0.05)(B, S, D)),
            "w1": _w((lambda *s: torch.randn(*s, dtype=torch.bfloat16) * 0.8)(D, F) * (D ** -0.5)),
            "w2": _w((lambda *s: torch.randn(*s, dtype=torch.bfloat16) * 0.2)(F, D) * (F ** -0.5)),
        }
    _B_in = _B_setup()

    return {
        "A_u": _A_in["u"],
        "A_A_re": _A_in["A_re"],
        "A_A_im": _A_in["A_im"],
        "A_B_re": _A_in["B_re"],
        "A_B_im": _A_in["B_im"],
        "A_C_re": _A_in["C_re"],
        "A_C_im": _A_in["C_im"],
        "A_log_dt": _A_in["log_dt"],
        "A_Dskip": _A_in["Dskip"],
        "B_x": _B_in["x"],
        "B_w1": _B_in["w1"],
        "B_w2": _B_in["w2"],
    }

def reference(A_u, A_A_re, A_A_im, A_B_re, A_B_im, A_C_re, A_C_im, A_log_dt, A_Dskip, B_x, B_w1, B_w2):
    def _A_ref(u, A_re, A_im, B_re, B_im, C_re, C_im, log_dt, Dskip):
        Bsz, L, D = u.shape
        dt = torch.exp(log_dt)[:, None]
        A = A_re + 1j * A_im
        Bc = B_re + 1j * B_im
        Cc = C_re + 1j * C_im
        logdA = dt * A
        dB = dt * Bc
        l = (lambda x, dt: x.to(dt))(torch.arange(L), A_re.dtype)
        P = torch.exp(logdA[:, :, None] * l[None, None, :])
        K = torch.einsum("dn,dnl,dn->dl", Cc, P, dB).real
        L2 = 2 * L
        Kp = _pad(K, ((0, 0), (0, L)))
        up = (lambda x, *d: x.permute(*d))(u, 0, 2, 1)
        up = _pad(up, ((0, 0), (0, 0), (0, L)))
        Kf = (lambda x, axes=(-2,-1): torch.fft.rfft2(x.float(), dim=axes))(Kp[:, None, :], axes=(-2, -1))
        Uf = (lambda x, axes=(-2,-1): torch.fft.rfft2(x.float(), dim=axes))(up[:, :, None, :], axes=(-2, -1))
        Yf = Uf * Kf[None, :, :, :]
        y = (lambda x, s, axes=(-2,-1): torch.fft.irfft2(x, s=s, dim=axes).to(torch.bfloat16))(Yf, (1, L2), axes=(-2, -1))[:, :, 0, :L]
        y = (lambda x, *d: x.permute(*d))(y, 0, 2, 1) + u * Dskip[None, None, :]
        return y

    def _B_ref(x, w1, w2):
        h = torch.einsum("bsd,df->bsf", x, w1)
        h = _silu(h)
        out = torch.einsum("bsf,fd->bsd", h, w2)
        return out

    x = A_u
    xn = _layernorm(x, axis=-1)
    return x + _A_ref(xn, A_A_re, A_A_im, A_B_re, A_B_im, A_C_re, A_C_im, A_log_dt, A_Dskip) + _B_ref(xn, B_w1, B_w2)
```

```python
import re
TRANS = ("v_exp_", "v_log_", "v_rcp_", "v_rsq_", "v_sqrt_", "v_sin_", "v_cos_")
def regs(tok):
    tok = tok.strip()
    tok = tok.lstrip("-")
    if tok.startswith("abs(") or tok.startswith("|"):
        tok = tok.replace("abs(", "").replace(")", "").replace("|", "")
    m = re.fullmatch(r"([vsa])(\d+)", tok)
    if m: return {(m.group(1), int(m.group(2)))}
    m = re.fullmatch(r"([vsa])\[(\d+):(\d+)\]", tok)
    if m: return {(m.group(1), i) for i in range(int(m.group(2)), int(m.group(3)) + 1)}
    if tok in ("vcc", "vcc_lo", "vcc_hi"): return {("s", 106), ("s", 107)}
    if tok == "m0": return {("s", 124)}
    if tok in ("exec", "exec_lo", "exec_hi"): return {("s", 126), ("s", 127)}
    return set()
def split_ops(s):
    out, depth, cur = [], 0, ""
    for ch in s:
        if ch in "[(": depth += 1
        if ch in "])": depth -= 1
        if ch == "," and depth == 0: out.append(cur.strip()); cur = ""
        else: cur += ch
    if cur.strip(): out.append(cur.strip())
    return out
class Ins:
    def __init__(s, text):
        s.text = text
        t = text.split(";")[0].strip()
        s.label = t.endswith(":")
        s.real = bool(t) and not s.label and not t.startswith(".")
        s.w, s.r = set(), set()
        s.kind = None; s.mn = ""
        if not s.real: return
        parts = t.split(None, 1)
        mn = s.mn = parts[0]
        ops = split_ops(parts[1]) if len(parts) > 1 else []
        mods = ""
        if ops:
            l = ops[-1].split(None, 1)
            ops[-1] = l[0]
            if len(l) > 1: mods = l[1]
        s.mods = mods; s.ops = ops
        R = [regs(o) for o in ops]
        U = lambda L: set().union(*L) if L else set()
        if mn.startswith("v_mfma"):
            s.kind = "mfma"; s.passes = 8 if "32x32x16" in mn else 4
            s.w = R[0]; s.ab = R[1] | R[2]; s.c = R[3]; s.r = s.ab | s.c
        elif mn.startswith("v_"):
            s.kind = "valu"
            s.trans = mn.startswith(TRANS); s.dot = mn.startswith("v_dot")
            s.dpp = "_dpp" in mn or "quad_perm" in mods or "row_" in mods
            s.rdlane = mn.startswith(("v_readfirstlane", "v_readlane"))
            s.perml = mn.startswith("v_permlane")
            if s.perml: s.w = R[0] | R[1]; s.r = R[0] | R[1]
            elif "_co_" in mn: s.w = R[0] | R[1]; s.r = U(R[2:])
            else:
                s.w = R[0]; s.r = U(R[1:])
                if mn.startswith(("v_fmac", "v_dot2c", "v_pk_fmac", "v_writelane")) or "sdwa" in mn or "UNUSED_PRESERVE" in mods: s.r |= R[0]
        elif mn.startswith("ds_"):
            s.kind = "ds"
            s.addtid = "addtid" in mn
            if mn.startswith("ds_read") or "_rtn" in mn or "permute" in mn or "swizzle" in mn:
                s.w = R[0]; s.r = U(R[1:])
                if "d16" in mn: s.r |= R[0]
            else: s.r = U(R)
        elif mn.startswith(("buffer_", "global_")):
            s.kind = "vmem"
            s.ldsdma = " lds" in (" " + mods) or "_lds_" in mn
            s.store = "store" in mn or "atomic" in mn
            s.wide = s.store and ("x3" in mn or "x4" in mn)
            if s.store:
                s.r = U(R); s.data = R[0] if mn.startswith("buffer_") else R[1]
            elif s.ldsdma: s.r = U(R)
            else: s.w = R[0]; s.r = U(R[1:])
        else:
            s.kind = "salu"
            if mn.startswith(("s_cmp", "s_cbranch", "s_branch", "s_waitcnt", "s_nop", "s_barrier", "s_sleep", "s_setprio", "s_endpgm", "s_bitcmp")):
                s.r = U(R)
            else:
                s.w = R[0] if R else set(); s.r = U(R[1:])
    def states(s):
        if s.mn == "s_nop": return int(s.ops[0], 0) + 1
        return 1
def need(p, c):
    n = 0
    V = lambda S: {x for x in S if x[0] in "va"}
    Sg = lambda S: {x for x in S if x[0] == "s"}
    if p.kind == "valu":
        pv, ps = V(p.w), Sg(p.w)
        if c.kind == "mfma" and pv & c.r: n = max(n, 2)
        if c.kind == "valu":
            if p.trans and pv & c.r: n = max(n, 1)
            if c.rdlane and pv & c.r: n = max(n, 1)
            if (c.dpp or c.perml) and pv & c.r: n = max(n, 2)
            if ps & c.r: n = max(n, 4 if (c.rdlane or c.mn.startswith("v_writelane")) else 2)
            if p.dot and pv & (c.r | c.w):
                same_c = (c.mn == p.mn and not (pv & set().union(*[regs(o) for o in c.ops[1:3]])))
                if not same_c: n = max(n, 3)
            if "sdwa" in p.mn and pv & (c.r | c.w): n = max(n, 1)
        if c.kind in ("vmem", "ds") and p.dot and pv & c.r: n = max(n, 3)
        if c.kind in ("vmem", "ds") and p.trans and pv & c.r: n = max(n, 1)
        if c.kind == "vmem" and ps & c.r: n = max(n, 5)
        if c.kind == "salu" and ps & c.r: n = max(n, 1)
    if p.kind == "mfma":
        big = 12 if p.passes == 8 else 8
        if c.kind == "mfma":
            if p.w & c.ab: n = max(n, big)
            if p.w & c.c and not (p.w == c.c and p.passes == c.passes): n = max(n, big - 2)
            if p.w & c.w and not (p.w == c.c): n = max(n, big)
        elif c.kind in ("valu", "ds", "vmem"):
            if p.w & (c.r | c.w): n = max(n, big)
            if c.kind == "valu" and p.c & c.w: n = max(n, 7 if p.passes == 8 else 3)
    if p.kind == "salu" and ("s", 124) in p.w:
        if (c.kind == "vmem" and c.ldsdma) or (c.kind == "ds" and c.addtid): n = max(n, 1)
    if p.kind == "vmem" and p.store and p.wide:
        if p.data & c.w: n = max(n, 2 if c.kind == "valu" else 1)
    return n
class Asm:
    def __init__(s): s.L = []
    def __call__(s, text, *a):
        if a: text = text % a
        for ln in text.split("\n"):
            ln = ln.strip()
            if ln: s.L.append(ln)
    def text(s):
        out = []
        for ln in s.L:
            c = Ins(ln)
            if c.real:
                dist, req = 0, 0
                for p in reversed(out):
                    if not p.real: continue
                    if dist >= 20: break
                    req = max(req, need(p, c) - dist)
                    dist += p.states()
                while req > 0:
                    k = min(req, 16)
                    out.append(Ins("s_nop %d" % (k - 1))); req -= k
            out.append(c)
        return "\n".join(("" if (i.label or not i.real) else "    ") + i.text for i in out) + "\n"
```

```python
import sys
sys.path.insert(0, "work")
from asmlib import Asm
NAME = "parallel_sum__ssm_conv_s4__dense_activation_silu__prompt"
DIAG = "--diag" in sys.argv
WS_FXF, WS_FXS, WS_FH, WS_FY, WS_ST = 0x1000, 0x9000, 0xA000, 0xB000, 0x10000
WS_XNF, WS_UB, WS_YT, WS_HF = 0x100000, 0x300000, 0x500000, 0x700000
WS_END = WS_HF + 86 * 65536
S_BASE, F_HIGH = 79872, 131072
KC, KCD, KCS = S_BASE, 16640, 4160
UL, ULD = S_BASE + 33280, 4608
EX = S_BASE + 42496
MISC = S_BASE + 50688
CNT_F, CNT_S = MISC + 256, MISC + 260
FLW = 19968
LOG2E, INV2PI, LN2 = 0x3FB8AA3B, 0x3E22F983, 0x3F317218
a = Asm()
lab = [0]
def L(p="L"):
    lab[0] += 1; return "%s_%d" % (p, lab[0])
nst = {"F": 0, "S": 0}
def stamp(role):
    if DIAG:
        i = nst[role]; nst[role] += 1
        assert i < 16
        a("s_memrealtime s[%d:%d]", 64 + 2 * i, 65 + 2 * i)
def dump_stamps(role):
    if not DIAG: return
    a("s_waitcnt vmcnt(0) lgkmcnt(0)")
    a("s_lshl_b32 s10, s2, 9\ns_lshl_b32 s11, s12, 6\ns_add_u32 s10, s10, s11\ns_add_u32 s10, s10, %d", WS_ST)
    a("v_mov_b32 v1, 0")
    for i in range(nst[role]):
        a("v_mov_b32 v2, s%d\nbuffer_store_dword v2, v1, s[44:47], s10 offen offset:%d", 64 + 2 * i, 4 * i)
def sig(vc, vone):
    a("s_mov_b64 exec, 1\nds_add_u32 v%d, v%d\ns_mov_b64 exec, -1", vc, vone)
def wait(vc, vt, target):
    l = L("LW")
    a("%s:\nds_read_b32 v%d, v%d\ns_waitcnt lgkmcnt(0)\nv_readfirstlane_b32 s10, v%d\ns_cmp_ge_u32 s10, %d\ns_cbranch_scc0 %s", l, vt, vc, vt, target, l)
def poll(vt, vaddr, soff, n=1, off=0):
    l, d = L("LP"), L("LD")
    a("s_mov_b32 s11, 0x8000")
    a("%s:", l)
    if n == 1:
        a("buffer_load_dword v%d, v%d, s[44:47], %s offen offset:%d sc1\ns_waitcnt vmcnt(0)\nv_cmp_ne_u32 vcc, s9, v%d", vt, vaddr, soff, off, vt)
    else:
        a("buffer_load_dwordx4 v[%d:%d], v%d, s[44:47], %s offen offset:%d sc1\ns_waitcnt vmcnt(0)", vt, vt + 3, vaddr, soff, off)
        a("v_xor_b32 v%d, s9, v%d\nv_xor_b32 v%d, s9, v%d\nv_xor_b32 v%d, s9, v%d\nv_xor_b32 v%d, s9, v%d", vt, vt, vt + 1, vt + 1, vt + 2, vt + 2, vt + 3, vt + 3)
        a("v_or_b32 v%d, v%d, v%d\nv_or3_b32 v%d, v%d, v%d, v%d\nv_cmp_ne_u32 vcc, 0, v%d", vt, vt, vt + 1, vt, vt, vt + 2, vt + 3, vt)
    a("s_nop 0\ns_cbranch_vccz %s\ns_sleep 4\ns_sub_u32 s11, s11, 1\ns_cbranch_scc0 %s\n%s:", d, l, d)
def vr(i, n): return "v[%d:%d]" % (i, i + n - 1)
def unpack(lo, hi, src):
    a("v_and_b32 v%d, s13, v%d\nv_lshlrev_b32 v%d, 16, v%d", hi, src, lo, src) if lo == src else a("v_lshlrev_b32 v%d, 16, v%d\nv_and_b32 v%d, s13, v%d", lo, src, hi, src)

a("s_cmp_ge_u32 s2, 256\ns_cbranch_scc1 L_end")
if DIAG: a("s_memrealtime s[64:65]"); nst["F"] = nst["S"] = 1
a("""
s_load_dwordx16 s[16:31], s[0:1], 0
s_load_dwordx2 s[32:33], s[0:1], 64
s_load_dwordx4 s[36:39], s[0:1], 80
s_load_dwordx2 s[40:41], s[0:1], 96
s_load_dwordx2 s[42:43], s[0:1], 112
v_lshrrev_b32 v1, 6, v0
v_and_b32 v0, 63, v0
v_readfirstlane_b32 s12, v1
v_mov_b32 v2, 0
v_mov_b32 v3, 0
v_mov_b32 v1, %d
ds_write_b64 v1, v[2:3]
s_and_b32 s10, s2, 7
s_lshr_b32 s11, s2, 3
s_and_b32 s14, s11, 3
s_lshr_b32 s8, s11, 2
s_and_b32 s4, s10, 3
s_lshl_b32 s4, s4, 2
s_add_u32 s4, s4, s14
s_lshr_b32 s5, s10, 2
s_lshl_b32 s5, s5, 3
s_add_u32 s5, s5, s8
s_lshl_b32 s6, s10, 5
s_add_u32 s6, s6, s11
s_lshl_b32 s7, s10, 2
s_add_u32 s7, s7, s14
s_and_b32 s3, s12, 3
s_mov_b32 s13, 0xffff0000
s_mov_b32 s46, %d
s_mov_b32 s47, 0x20000
s_mov_b32 s50, 0x200000
s_mov_b32 s51, 0x20000
s_waitcnt lgkmcnt(0)
s_load_dword s9, s[42:43], 0
s_mov_b32 s44, s42
s_mov_b32 s45, s43
s_mov_b32 s48, s16
s_mov_b32 s49, s17
s_barrier
s_cmp_ge_u32 s12, 4
s_cbranch_scc0 L_F
""", CNT_F, WS_END)

a("""
s_lshl_b32 s15, s4, 4
s_add_u32 s15, s15, s5            ; tb8
s_lshl_b32 s10, s15, 13
s_lshl_b32 s11, s3, 8
s_add_u32 s10, s10, s11
v_lshrrev_b32 v2, 3, v0           ; row
v_and_b32 v3, 7, v0               ; c
v_lshlrev_b32 v1, 10, v2
v_lshl_or_b32 v1, v3, 4, v1
buffer_load_dwordx4 v[4:7], v1, s[48:51], s10 offen
buffer_load_dwordx4 v[8:11], v1, s[48:51], s10 offen offset:128
s_lshl_b32 s34, s6, 2
s_load_dword s35, s[30:31], s34
s_load_dword s34, s[32:33], s34
s_lshl_b32 s10, s6, 9
s_lshl_b32 s11, s3, 7
s_add_u32 s10, s10, s11
v_lshlrev_b32 v18, 1, v0
v_add_u32 v18, s10, v18
""")
for i in range(6):
    a("global_load_ushort v%d, v18, s[%d:%d]", 12 + i, 18 + 2 * i, 19 + 2 * i)
a("""
s_getpc_b64 s[52:53]
L_pc:
s_sub_u32 s52, s52, L_pc-%s_kernel
s_subb_u32 s53, s53, 0
s_lshl_b32 s10, s3, 13
v_lshlrev_b32 v19, 7, v0
v_add_u32 v19, s10, v19
v_min_u32 v19, L_end-%s_kernel, v19
global_load_dword v19, v19, s[52:53]
v_mov_b32 v30, %d
v_mov_b32 v31, 1
s_mov_b32 s54, 0x3f803f80
v_mov_b32 v20, 0
v_mov_b32 v21, 0
v_lshlrev_b32 v22, 5, v2
v_add_u32 v22, %d, v22
s_lshl_b32 s10, s3, 3
v_add_u32 v23, s10, v22
s_waitcnt vmcnt(7)
""", NAME, NAME, CNT_S, MISC)
stamp("S")
for i in range(8):
    a("v_dot2c_f32_bf16 v20, s54, v%d\nv_dot2c_f32_bf16 v21, v%d, v%d", 4 + i, 4 + i, 4 + i)
for m in ["quad_perm:[1,0,3,2]", "quad_perm:[2,3,0,1]", "row_half_mirror"]:
    a("v_add_f32_dpp v20, v20, v20 %s row_mask:0xf bank_mask:0xf\nv_add_f32_dpp v21, v21, v21 %s row_mask:0xf bank_mask:0xf", m, m)
a("ds_write_b64 v23, v[20:21]")
sig(30, 31)
for i in range(8): unpack(32 + 2 * i, 33 + 2 * i, 4 + i)
wait(30, 24, 4)
a("""
ds_read_b128 v[24:27], v22
ds_read_b128 v[48:51], v22 offset:16
s_mul_i32 s9, s9, 1664525
s_add_u32 s9, s9, 1013904223
s_mul_i32 s55, s3, 8704
s_add_u32 s55, s55, %d
v_mul_u32_u24 v52, 272, v2
v_lshl_add_u32 v52, v3, 4, v52
v_add_u32 v52, s55, v52
v_mul_u32_u24 v53, 272, v3
v_lshl_add_u32 v53, v2, 4, v53
v_add_u32 v53, s55, v53
v_bfe_u32 v54, v0, 2, 2
v_mul_u32_u24 v54, 272, v54
v_lshrrev_b32 v55, 4, v0
v_lshl_add_u32 v54, v55, 5, v54
v_and_b32 v55, 3, v0
v_lshl_add_u32 v54, v55, 3, v54
v_add_u32 v54, s55, v54
s_waitcnt lgkmcnt(0)
v_pk_add_f32 v[24:25], v[24:25], v[26:27]
v_pk_add_f32 v[48:49], v[48:49], v[50:51]
v_pk_add_f32 v[24:25], v[24:25], v[48:49]
v_mul_f32 v24, 0x3b000000, v24
v_mul_f32 v25, 0x3b000000, v25
v_fma_f32 v25, -v24, v24, v25
v_max_f32 v25, 0, v25
v_cvt_pk_bf16_f32 v26, v24, v25
v_lshlrev_b32 v24, 16, v26
v_and_b32 v25, s13, v26
v_add_f32 v25, 0x3727c5ac, v25
v_cvt_pk_bf16_f32 v25, v25, v25
v_and_b32 v25, s13, v25
v_sqrt_f32 v25, v25
v_cvt_pk_bf16_f32 v25, v25, v25
v_and_b32 v25, s13, v25
v_rcp_f32 v25, v25
""", S_BASE)
for i in range(8):
    a("v_pk_add_f32 %s, %s, v[24:25] op_sel_hi:[1,0] neg_lo:[0,1] neg_hi:[0,1]", vr(32 + 2 * i, 2), vr(32 + 2 * i, 2))
for i in range(8):
    a("v_cvt_pk_bf16_f32 v%d, v%d, v%d", 4 + i, 32 + 2 * i, 33 + 2 * i)
for i in range(8): unpack(32 + 2 * i, 33 + 2 * i, 4 + i)
for i in range(8):
    a("v_pk_mul_f32 %s, %s, v[24:25] op_sel:[0,1] op_sel_hi:[1,1]", vr(32 + 2 * i, 2), vr(32 + 2 * i, 2))
for i in range(8):
    a("v_cvt_pk_bf16_f32 v%d, v%d, v%d", 4 + i, 32 + 2 * i, 33 + 2 * i)
a("""
ds_write_b128 v52, v[4:7]
ds_write_b128 v52, v[8:11] offset:128
ds_read_b128 v[32:35], v53
ds_read_b128 v[36:39], v53 offset:128
ds_read_b64_tr_b16 v[40:41], v54
ds_read_b64_tr_b16 v[42:43], v54 offset:1088
ds_read_b64_tr_b16 v[44:45], v54 offset:128
ds_read_b64_tr_b16 v[46:47], v54 offset:1216
s_lshr_b32 s10, s15, 2
s_lshl_b32 s10, s10, 15           ; tb32*32K
s_and_b32 s11, s15, 3
s_lshl_b32 s11, s11, 7
s_add_u32 s10, s10, s11
s_lshl_b32 s11, s3, 13
s_add_u32 s10, s10, s11
s_add_u32 s10, s10, %d
s_add_u32 s56, s10, 4096
v_lshlrev_b32 v1, 9, v2
v_lshl_or_b32 v1, v3, 4, v1
s_lshl_b32 s11, s15, 13
s_lshl_b32 s57, s3, 11
s_add_u32 s11, s11, s57
s_add_u32 s11, s11, %d
v_lshlrev_b32 v26, 4, v0          ; lane*16
s_waitcnt lgkmcnt(4)
buffer_store_dwordx4 v[32:35], v1, s[44:47], s10 offen sc1
buffer_store_dwordx4 v[36:39], v1, s[44:47], s56 offen sc1
s_waitcnt lgkmcnt(0)
buffer_store_dwordx4 v[40:43], v26, s[44:47], s11 offen sc1
buffer_store_dwordx4 v[44:47], v26, s[44:47], s11 offen offset:1024 sc1
""", WS_XNF, WS_UB)
stamp("S")
a("""
s_lshl_b32 s10, s15, 7
s_lshl_b32 s11, s3, 2
s_add_u32 s10, s10, s11
s_add_u32 s10, s10, %d
s_lshl_b32 s11, s3, 10
s_lshl_b32 s56, s15, 2
s_add_u32 s11, s11, s56
s_add_u32 s11, s11, %d
v_mov_b32 v27, s10
v_writelane_b32 v27, s11, 1
v_mov_b32 v28, s9
""", WS_FXF, WS_FXS)
a("""
s_and_b32 s10, s3, 2
s_lshl_b32 s10, s10, 3            ; 0 or 16
s_lshr_b32 s35, s35, s10
s_lshl_b32 s35, s35, 16
s_lshr_b32 s34, s34, s10
s_lshl_b32 s34, s34, 16
v_mov_b32 v20, s35
s_mov_b32 s56, 0x%x
v_mul_f32 v21, s56, v20
v_fma_f32 v22, v20, s56, -v21
v_fmac_f32 v22, 0x32a57060, v20
v_exp_f32 v21, v21
v_mul_f32 v22, 0x%x, v22
v_fmac_f32 v21, v21, v22
v_cvt_pk_bf16_f32 v21, v21, v21
v_and_b32 v29, s13, v21           ; dt
""", LOG2E, LN2)
a("s_waitcnt vmcnt(5)")
for i in range(6): a("v_lshlrev_b32 v%d, 16, v%d", 12 + i, 12 + i)
a("""
v_mul_f32 v20, v29, v12
v_mul_f32 v21, v29, v13
v_mul_f32 v20, s56, v20           ; a*log2e
v_mul_f32 v21, 0x%x, v21          ; b/2pi
v_mul_f32 v14, v29, v14
v_mul_f32 v15, v29, v15
""", INV2PI)
def cmul(d, x, y, t=None):
    t = d if (t is None) else t
    assert not (t in (x, y))
    a("v_pk_mul_f32 %s, %s, %s op_sel_hi:[1,0]", vr(t, 2), vr(x, 2), vr(y, 2))
    a("v_pk_fma_f32 %s, %s, %s, %s op_sel:[1,1,0] op_sel_hi:[0,1,1] neg_lo:[0,1,0]", vr(d, 2), vr(x, 2), vr(y, 2), vr(t, 2))
def cexp(d, e, t):
    if e == 1: a("v_exp_f32 v%d, v20\nv_fract_f32 v%d, v21", t, t + 1)
    else:
        f = {8: "0x41000000", 256: "0x43800000"}[e]
        a("v_mul_f32 v%d, %s, v20\nv_mul_f32 v%d, %s, v21\nv_exp_f32 v%d, v%d\nv_fract_f32 v%d, v%d", t, f, t + 1, f, t, t, t + 1, t + 1)
    a("v_cos_f32 v%d, v%d\nv_sin_f32 v%d, v%d", d, t + 1, d + 1, t + 1)
    a("v_pk_mul_f32 %s, %s, %s op_sel_hi:[1,0]", vr(d, 2), vr(d, 2), vr(t, 2))
W = lambda e: 56 + 2 * e
E1, E8, Z256, Z512, Z768, Z1024, ZT = 22, 24, 48, 50, 74, 76, 78
cmul(W(0), 16, 14)
cexp(E8, 8, 12); cexp(E1, 1, 12); cexp(Z256, 256, 12)
a("s_waitcnt vmcnt(0)\ns_mov_b64 exec, 3\nbuffer_store_dword v28, v27, s[44:47], 0 offen sc1\ns_mov_b64 exec, -1")
stamp("S")
a("s_mul_i32 s10, s3, 8704\ns_add_u32 m0, s10, %d", S_BASE - 49152)
def put(row, src, neg, tmp):
    a("v_cvt_pk_bf16_f32 v%d, v%d, %sv%d", tmp, src, "-" if neg else "", src + 1)
    rows = row if isinstance(row, list) else [row]
    for r in rows: a("ds_write_addtid_b32 v%d offset:%d", tmp, 49152 + 272 * r)
a("v_mov_b32 v12, 0x3f80\nds_write_addtid_b32 v12 offset:49152")
put(1, E8, False, 13)
cur = E8
for j in range(2, 32):
    nxt = 32 + 2 * (j & 1)
    cmul(nxt, cur, E8); put(j, nxt, False, 12 + (j & 1)); cur = nxt
a("""
v_and_b32 v36, 31, v0
v_mul_u32_u24 v36, 272, v36
v_lshrrev_b32 v37, 5, v0
v_lshl_add_u32 v36, v37, 4, v36
v_add_u32 v36, s55, v36
""")
for s in range(8): a("ds_read_b128 %s, v36 offset:%d", vr(96 + 4 * s, 4), 32 * s)
put(0, W(0), True, 12)
for e in range(1, 9):
    cmul(W(e), W(e - 1), E1)
    put({4: [4, 11], 8: 15}.get(e, e), W(e), True, 12 + (e & 1))
k = [0]
def hi(row, we, z):
    k[0] ^= 1
    cmul(32 + 2 * k[0], W(we), z); put(row, 32 + 2 * k[0], True, 12 + k[0])
hi(8, 0, Z256); hi(9, 2, Z256); hi([10, 12], 4, Z256); hi(13, 6, Z256); hi(14, 8, Z256)
cmul(Z512, Z256, Z256)
hi(16, 0, Z512); hi(17, 4, Z512); hi(18, 8, Z512)
cmul(Z768, Z512, Z256)
hi(20, 0, Z768); hi(21, 4, Z768); hi(22, 8, Z768)
cmul(Z1024, Z512, Z512)
hi(24, 0, Z1024); hi(25, 8, Z1024)
cmul(ZT, Z1024, Z256); hi(26, 0, ZT); hi(27, 8, ZT)
cmul(ZT, Z1024, Z512); hi(28, 0, ZT); hi(29, 8, ZT)
cmul(ZT, Z1024, Z768); hi(30, 0, ZT); hi(31, 8, ZT)
for s in range(8): a("ds_read_b128 %s, v36 offset:%d", vr(128 + 4 * s, 4), 32 * s)
a("""
s_lshr_b32 s56, s3, 1
s_and_b32 s57, s3, 1
s_mul_i32 s58, s56, %d
s_add_u32 s58, s58, %d            ; KC_d
s_mul_i32 s59, s56, %d
s_add_u32 s59, s59, %d            ; UL_d
s_lshl_b32 s10, s56, 12
s_add_u32 s10, s10, %d
v_add_u32 v38, s10, v26
v_and_b32 v39, 31, v0
v_lshlrev_b32 v39, 4, v39
v_sub_u32 v39, s58, v39           ; KC_d - 16 j
""", KCD, KC, ULD, UL, EX)
for s in range(8):
    a("s_waitcnt lgkmcnt(%d)", 7 - s)
    a("v_mfma_f32_32x32x16_bf16 v[160:175], %s, %s, %s", vr(128 + 4 * s, 4), vr(96 + 4 * s, 4), "0" if s == 0 else "v[160:175]")
stamp("S")
R = lambda r: 160 + r
def kwrite(base, off0, vals, tmp0):
    cache = {}
    t = [tmp0]
    def pair(lo_l):
        key = (vals[lo_l + 1], vals[lo_l])
        if key not in cache:
            a("v_cvt_pk_bf16_f32 v%d, v%d, v%d", t[0], key[0], key[1]); cache[key] = t[0]; t[0] += 1
        return cache[key]
    for e in range(len(vals) - 1):
        p = pair(e)
        o = off0 - 2 * e + (0 if e % 2 == 0 else 4158)
        a("ds_write_b32 v%d, v%d offset:%d\nds_write_b32 v%d, v%d offset:%d", base, p, o, base, p, o + 8316)
a("s_cmp_eq_u32 s57, 0\ns_cbranch_scc0 L_mh1")
a("ds_write_b128 v38, v[172:175] offset:3072")
sig(30, 31)
a("v_lshlrev_b32 v40, 3, v37\nv_sub_u32 v40, v39, v40\nv_lshlrev_b32 v41, 9, v37\nv_sub_u32 v41, v39, v41")
wait(30, 24, 8)
for qd in range(3): a("ds_read_b128 %s, v38 offset:%d", vr(96 + 4 * qd, 4), 1024 * qd)
a("s_waitcnt lgkmcnt(0)")
for i in range(6): a("v_pk_add_f32 %s, %s, %s", vr(160 + 2 * i, 2), vr(160 + 2 * i, 2), vr(96 + 2 * i, 2))
kwrite(40, 4100, [R(0), R(1), R(2), R(3), R(7)], 112)
kwrite(40, 4100 - 512, [R(4), R(4), R(5), R(6), R(6)], 116)
kwrite(41, 4100 - 1024, [R(8)] * 3 + [R(9)] * 3 + [R(10)] * 3, 120)
a("""
v_mov_b32 v42, 0
v_cvt_pk_bf16_f32 v43, v160, v42
s_mov_b64 exec, 1
ds_write_b32 v40, v43 offset:%d
ds_write_b32 v40, v43 offset:%d
s_mov_b64 exec, -1
s_branch L_mhj
L_mh1:
s_nop 7
s_nop 7
""", KCS + 4100, 3 * KCS + 4096)
for qd in range(3): a("ds_write_b128 v38, %s offset:%d", vr(160 + 4 * qd, 4), 1024 * qd)
sig(30, 31)
a("""
v_lshlrev_b32 v41, 10, v37
v_sub_u32 v41, v39, v41
v_and_b32 v42, 1, v0
v_cmp_eq_u32 vcc, 1, v42
v_bfe_u32 v43, v0, 3, 2           ; copy s
v_mul_u32_u24 v44, %d, v43
v_lshrrev_b32 v43, 1, v43
v_sub_u32 v43, v3, v43
v_lshl_add_u32 v44, v43, 2, v44
v_add_u32 v44, s58, v44
v_mov_b32 v42, 0
""", KCS)
wait(30, 24, 8)
a("ds_read_b128 v[96:99], v38 offset:3072\nds_write_b32 v44, v42 offset:4104\ns_waitcnt lgkmcnt(0)")
a("v_pk_add_f32 v[172:173], v[172:173], v[96:97]\nv_pk_add_f32 v[174:175], v[174:175], v[98:99]")
a("v_cndmask_b32 v100, v172, v173, vcc\nv_cndmask_b32 v101, v174, v175, vcc")
kwrite(41, 4100 - 2048, [R(12)] * 4 + [100] + [R(13)] * 4, 112)
kwrite(41, 4100 - 2048 - 512, [R(14)] * 4 + [101] + [R(15)] * 4, 120)
a("L_mhj:")
stamp("S")
a("""
s_lshr_b32 s10, s6, 6
s_lshl_b32 s10, s10, 10
s_add_u32 s60, s10, %d
v_lshrrev_b32 v44, 1, v0
v_and_b32 v45, 1, v0
v_lshlrev_b32 v46, 13, v44
v_lshl_or_b32 v46, v45, 4, v46
v_mul_u32_u24 v47, %d, v45
v_lshl_add_u32 v47, v44, 4, v47
v_add_u32 v47, %d, v47
v_mov_b32 v96, 0
v_mov_b32 v97, 0
v_mov_b32 v98, 0
v_mov_b32 v99, 0
s_mov_b32 exec_hi, 0x0fffffff
ds_write_b128 v47, v[96:99]
s_mov_b64 exec, -1
s_lshl_b32 s10, s3, 10
v_add_u32 v47, s10, v47
s_lshl_b32 s61, s3, 19
s_lshl_b32 s10, s6, 5
s_add_u32 s61, s61, s10
s_add_u32 s61, s61, %d
s_add_u32 s62, s61, 0x40000
""", WS_FXS, ULD, UL, WS_UB)
poll(100, 26, "s60", n=4)
stamp("S")
a("""
buffer_load_dwordx4 v[96:99], v46, s[44:47], s61 offen sc1
buffer_load_dwordx4 v[100:103], v46, s[44:47], s62 offen sc1
v_and_b32 v44, 15, v0             ; b / n
v_lshrrev_b32 v45, 4, v0          ; g
v_sub_u32 v40, 3, v44
v_and_b32 v40, 3, v40             ; s
v_mul_u32_u24 v41, %d, v40
v_lshl_add_u32 v41, v45, 4, v41
v_lshlrev_b32 v42, 1, v44
v_sub_u32 v41, v41, v42
s_lshl_b32 s10, s57, 8
s_sub_u32 s11, s58, s10
s_add_u32 s11, s11, %d
v_add_u32 v40, s11, v41           ; vA
v_lshlrev_b32 v41, 5, v44
v_lshl_add_u32 v41, v45, 4, v41
s_sub_u32 s11, s59, s10
s_add_u32 s11, s11, 256
v_add_u32 v41, s11, v41           ; vB
s_waitcnt vmcnt(1)
ds_write_b128 v47, v[96:99] offset:480
s_waitcnt vmcnt(0)
ds_write_b128 v47, v[100:103] offset:992
""", KCS - 2, 4070 - 3776)
sig(30, 31)
wait(30, 24, 12)
stamp("S")
AF = lambda buf, i: 64 + 64 * buf + 4 * i
BF = lambda buf, v: 96 + 64 * buf + 4 * v
ACC = lambda j: 192 + 4 * j
def conv_reads(pp):
    buf = pp & 1; out = []
    for i in range(8):
        o = 3776 - 64 * pp - 512 * i
        out.append("ds_read_b64 %s, v40 offset:%d" % (vr(AF(buf, i), 2), o))
        out.append("ds_read_b64 %s, v40 offset:%d" % (vr(AF(buf, i) + 2, 2), o + 8))
        out.append("ds_read_b128 %s, v41 offset:%d" % (vr(BF(buf, i), 4), 192 - 64 * pp + 512 * i))
    return out
for r in conv_reads(0): a(r)
for pp in range(4):
    a("s_waitcnt lgkmcnt(0)")
    nxt = conv_reads(pp + 1) if pp < 3 else []
    buf = pp & 1
    for i in range(8):
        for j in range(i, 8):
            a("v_mfma_f32_16x16x32_bf16 %s, %s, %s, %s", vr(ACC(j), 4), vr(AF(buf, i), 4), vr(BF(buf, j - i), 4), "0" if (pp == 0 and i == 0) else vr(ACC(j), 4))
            if nxt: a(nxt.pop(0))
stamp("S")
sig(30, 31)
a("""
v_lshlrev_b32 v42, 6, v44
v_lshl_add_u32 v42, v45, 4, v42
s_lshl_b32 s10, s57, 13
s_add_u32 s10, s10, s58
v_add_u32 v42, s10, v42
s_lshl_b32 s10, s57, 12
s_add_u32 s10, s10, s58
v_lshlrev_b32 v43, 5, v0
v_add_u32 v43, s10, v43
s_lshl_b32 s10, s57, 11
s_add_u32 s11, s10, s59
v_add_u32 v46, s11, v26
s_lshl_b32 s11, s6, 13
s_lshl_b32 s61, s56, 12
s_add_u32 s61, s61, s11
s_add_u32 s61, s61, s10
s_add_u32 s61, s61, %d
s_lshl_b32 s11, s6, 3
s_lshl_b32 s62, s56, 2
s_add_u32 s62, s62, s11
s_add_u32 s62, s62, s10
s_add_u32 s62, s62, %d            ; y flag
s_mov_b32 s35, s34
""", WS_YT, WS_FY)
wait(30, 24, 16)
for j in range(8): a("ds_write_b128 v42, %s offset:%d", vr(ACC(j), 4), 1024 * j)
sig(30, 31)
a("ds_read_b128 v[64:67], v46 offset:480\nds_read_b128 v[68:71], v46 offset:1504")
wait(30, 24, 20)
for rho in range(2):
    for p in range(2):
        for hh in range(2):
            a("ds_read_b128 %s, v43 offset:%d", vr(96 + 16 * rho + 8 * p + 4 * hh, 4), 2048 * rho + 8192 * p + 16 * hh)
for i in range(8):
    unpack(72 + 2 * i, 73 + 2 * i, 64 + i)
    a("v_pk_mul_f32 %s, %s, s[34:35]", vr(72 + 2 * i, 2), vr(72 + 2 * i, 2))
    a("v_cvt_pk_bf16_f32 v%d, v%d, v%d", 64 + i, 72 + 2 * i, 73 + 2 * i)
    unpack(72 + 2 * i, 73 + 2 * i, 64 + i)
a("s_waitcnt lgkmcnt(0)")
for rho in range(2):
    for i in range(4):
        x = 96 + 16 * rho + 2 * i; u = 72 + 8 * rho + 2 * i
        a("v_pk_add_f32 %s, %s, %s", vr(x, 2), vr(x, 2), vr(x + 8, 2))
        a("v_cvt_pk_bf16_f32 v%d, v%d, v%d", x + 8, x, x + 1)
        unpack(x, x + 1, x + 8)
        a("v_pk_add_f32 %s, %s, %s", vr(x, 2), vr(x, 2), vr(u, 2))
        a("v_cvt_pk_bf16_f32 v%d, v%d, v%d", 64 + 4 * rho + i, x, x + 1)
    a("buffer_store_dwordx4 %s, v26, s[44:47], s61 offen offset:%d sc1", vr(64 + 4 * rho, 4), 1024 * rho)
a("v_mov_b32 v27, 0\ns_waitcnt vmcnt(0)\ns_mov_b64 exec, 1\nbuffer_store_dword v28, v27, s[44:47], s62 offen sc1\ns_mov_b64 exec, -1")
stamp("S")
a("s_or_b32 s10, s2, s3\ns_cmp_eq_u32 s10, 0\ns_cbranch_scc0 L_Sdone\ns_mov_b32 s60, %d\nL_nu:", WS_FXS)
poll(100, 26, "s60", n=4)
a("s_add_u32 s60, s60, 1024\ns_cmp_lt_u32 s60, %d\ns_cbranch_scc1 L_nu", WS_FY)
a("s_mov_b64 exec, 1\nbuffer_store_dword v28, v27, s[44:47], 0 offen sc1\ns_mov_b64 exec, -1\nL_Sdone:")
dump_stamps("S")
a("s_endpgm")

a("""
L_F:
s_setprio 2
s_mov_b32 s52, s36
s_mov_b32 s53, s37
s_mov_b32 s54, 1409024
s_mov_b32 s55, 0x20000
s_mov_b32 s56, s38
s_mov_b32 s57, s39
s_mov_b32 s58, 1409024
s_mov_b32 s59, 0x20000
s_mov_b32 s60, s40
s_mov_b32 s61, s41
s_mov_b32 s62, 0x200000
s_mov_b32 s63, 0x20000
s_mul_i32 s15, s5, 3
s_max_u32 s10, s5, 11
s_sub_u32 s10, s10, 11
s_sub_u32 s15, s15, s10
s_cmp_ge_u32 s5, 11
s_cselect_b32 s34, 8, 12
s_lshl_b32 s35, s14, 1
s_add_u32 s35, s35, s8            ; rotation
v_mov_b32 v7, 0x40000000
""")
for n in range(3):
    a("""
v_add_u32 v4, %d, v0
v_mul_u32_u24 v5, 5462, v4
v_lshrrev_b32 v5, 16, v5
v_mul_u32_u24 v6, 12, v5
v_sub_u32 v6, v4, v6
v_cmp_gt_u32 vcc, s34, v6
v_mul_u32_u24 v5, 2752, v5
v_lshl_add_u32 v5, v6, 4, v5
v_cndmask_b32 v%d, v7, v5, vcc
""", 64 * n, 8 + n)
    if n: a("v_subrev_u32 v%d, %d, v%d", 8 + n, 1024 * n, 8 + n)
a("s_lshl_b32 s16, s15, 6")
for c in range(8):
    a("""
s_add_u32 s10, s35, %d
s_and_b32 s10, s10, 7
s_lshl_b32 s10, s10, 2
s_add_u32 s10, s10, s3            ; ks
s_mul_i32 s11, s10, 3072
s_cmp_ge_u32 s10, 26
s_cselect_b32 s17, %d, 0
s_add_u32 m0, s11, s17
s_mul_i32 s10, s10, 44032
s_add_u32 s10, s10, s16
buffer_load_dwordx4 v8, s[52:55], s10 offen lds
buffer_load_dwordx4 v9, s[52:55], s10 offen offset:1024 lds
buffer_load_dwordx4 v10, s[52:55], s10 offen offset:2048 lds
""", c, F_HIGH - S_BASE)
stamp("F")
a("""
v_mov_b32 v30, %d
v_mov_b32 v31, 1
v_lshlrev_b32 v26, 4, v0          ; lane*16
v_bfe_u32 v1, v0, 2, 2            ; r
v_and_b32 v2, 3, v0               ; c
v_lshrrev_b32 v3, 5, v0           ; g
v_bfe_u32 v4, v0, 4, 1            ; fh
v_lshl_add_u32 v5, v3, 3, v1
v_mul_u32_u24 v5, 192, v5
v_lshl_add_u32 v5, v4, 5, v5
v_lshl_add_u32 v12, v2, 3, v5     ; vW0
v_add_u32 v13, 64512, v12
v_add_u32 v14, %d, v12
v_lshlrev_b32 v5, 7, v1
v_lshl_or_b32 v5, v2, 2, v5
s_lshl_b32 s18, s4, 2
s_add_u32 s18, s18, s3            ; tb32
s_lshl_b32 s19, s18, 9
s_add_u32 s19, s19, %d
s_waitcnt lgkmcnt(0)
s_mul_i32 s9, s9, 1664525
s_add_u32 s9, s9, 1013904223
""", CNT_F, F_HIGH, WS_FXF)
poll(6, 5, "s19")
stamp("F")
sig(30, 31)
a("s_lshl_b32 s10, s18, 15\ns_add_u32 s10, s10, %d", WS_XNF)
XN = lambda s: 128 + 4 * s
for s in range(32):
    a("buffer_load_dwordx4 %s, v26, s[44:47], s10 offen offset:%d sc1", vr(XN(s), 4), 1024 * (s & 3))
    if s & 3 == 3 and s < 31: a("s_add_u32 s10, s10, 4096")
wait(30, 6, 4)
stamp("F")
AW = lambda s, u: 44 + 12 * (s % 3) + 4 * u
A1 = lambda u: 80 + 16 * u
def w1_reads(s):
    base, o = (12, 3072 * s) if s <= 20 else ((13, 3072 * (s - 21)) if s < 26 else (14, 3072 * (s - 26)))
    out = []
    for u in range(3):
        out.append("ds_read_b64_tr_b16 %s, v%d offset:%d" % (vr(AW(s, u), 2), base, o + 64 * u))
        out.append("ds_read_b64_tr_b16 %s, v%d offset:%d" % (vr(AW(s, u) + 2, 2), base, o + 64 * u + 768))
    return out
for s in range(2):
    for r in w1_reads(s): a(r)
for s in range(32):
    a("s_waitcnt vmcnt(%d) lgkmcnt(%d)", 31 - s, 6 if s < 31 else 0)
    nxt = w1_reads(s + 2) if s + 2 < 32 else []
    for u in range(3):
        a("v_mfma_f32_32x32x16_bf16 %s, %s, %s, %s", vr(A1(u), 16), vr(AW(s, u), 4), vr(XN(s), 4), "0" if s == 0 else vr(A1(u), 16))
        for r in nxt[2 * u:2 * u + 2]: a(r)
stamp("F")
sig(30, 31)
a("""
s_mov_b32 s20, 0x%x
s_mov_b32 s21, s20
s_lshl_b32 s10, s15, 17
s_lshl_b32 s11, s18, 10
s_add_u32 s22, s10, s11
s_add_u32 s22, s22, %d
""", LOG2E | 0x80000000, WS_HF)
def silu_unit(u):
    for q2 in range(2):
        base = A1(u) + 8 * q2; T = 128 + 16 * q2; O = 160 + 8 * u + 4 * q2
        for i in range(4): a("v_cvt_pk_bf16_f32 v%d, v%d, v%d", T + 8 + i, base + 2 * i, base + 2 * i + 1)
        for i in range(4): unpack(base + 2 * i, base + 2 * i + 1, T + 8 + i)
        for i in range(4): a("v_pk_mul_f32 %s, %s, s[20:21]", vr(T + 2 * i, 2), vr(base + 2 * i, 2))
        for i in range(8): a("v_exp_f32 v%d, v%d", T + i, T + i)
        for i in range(4): a("v_pk_add_f32 %s, %s, 1.0 op_sel_hi:[1,0]", vr(T + 2 * i, 2), vr(T + 2 * i, 2))
        for i in range(8): a("v_rcp_f32 v%d, v%d", T + i, T + i)
        for i in range(4): a("v_pk_mul_f32 %s, %s, %s", vr(T + 2 * i, 2), vr(T + 2 * i, 2), vr(base + 2 * i, 2))
        for i in range(4): a("v_cvt_pk_bf16_f32 v%d, v%d, v%d", O + i, T + 2 * i, T + 2 * i + 1)
        a("buffer_store_dwordx4 %s, v26, s[44:47], s22 offen sc1\ns_add_u32 s22, s22, 65536", vr(O, 4))
silu_unit(0); silu_unit(1)
a("s_cmp_ge_u32 s5, 11\ns_cbranch_scc1 L_skipu2")
silu_unit(2)
a("L_skipu2:")
stamp("F")
a("""
v_lshrrev_b32 v5, 3, v0           ; row
v_and_b32 v6, 7, v0               ; dc
v_lshlrev_b32 v7, 2, v4
v_xor_b32 v7, v7, v6
v_lshlrev_b32 v8, 10, v5
v_lshl_or_b32 v8, v7, 4, v8
v_add_u32 v9, 7168, v8
v_lshl_add_u32 v7, v3, 2, v1
v_lshlrev_b32 v7, 7, v7
v_lshl_add_u32 v7, v4, 5, v7
v_lshl_add_u32 v7, v2, 3, v7
v_lshrrev_b32 v10, 1, v1
v_lshl_add_u32 v7, v10, 6, v7
v_xor_b32 v10, 64, v7
s_mul_i32 s23, s3, %d
s_lshl_b32 s24, s3, 13
s_add_u32 s24, s24, %d
v_add_u32 v12, s23, v7
v_add_u32 v13, s23, v10
v_add_u32 v14, s24, v7
v_add_u32 v15, s24, v10
s_mul_i32 s25, s3, %d
s_lshl_b32 s10, s8, 7
s_add_u32 s25, s25, s10           ; w2 soffset
s_lshl_b32 s10, s4, 8
s_lshr_b32 s11, s3, 1
s_lshl_b32 s11, s11, 7
s_add_u32 s10, s10, s11
s_lshl_b32 s11, s5, 3
s_add_u32 s10, s10, s11
s_and_b32 s11, s3, 1
s_lshl_b32 s11, s11, 2
s_add_u32 s26, s10, s11
s_add_u32 s26, s26, %d
v_mov_b32 v27, 0
v_mov_b32 v28, s9
""", FLW, F_HIGH, 22 * 16384, WS_FH)
wait(30, 11, 8)
def slot_of(k): return k if k < 13 else k - 13
def w2_dma(k):
    sl = slot_of(k)
    a("s_add_u32 m0, %s, %d", "s23" if sl < 9 else "s24", 2048 * (sl if sl < 9 else sl - 9))
    a("buffer_load_dwordx4 v8, s[56:59], s25 offen lds\nbuffer_load_dwordx4 v9, s[56:59], s25 offen offset:1024 lds\ns_add_u32 s25, s25, 16384")
def w2_reads(k, dst):
    sl = slot_of(k); out = []
    for dh in range(2):
        base = (12 if sl < 9 else 14) + dh; o = 2048 * (sl if sl < 9 else sl - 9)
        for e in range(2): out.append("ds_read_b64_tr_b16 %s, v%d offset:%d" % (vr(dst + 4 * dh + 2 * e, 2), base, o + 1024 * e))
    return out
for k in range(4): w2_dma(k)
a("s_waitcnt vmcnt(8)\ns_mov_b64 exec, 1\nbuffer_store_dword v28, v27, s[44:47], s26 offen sc1\ns_mov_b64 exec, -1")
stamp("F")
for k in range(4, 13): w2_dma(k)
PK = lambda k: 128 + 8 * k
for g3 in range(3):
    a("s_waitcnt vmcnt(%d)", 20)
    for k in range(3 * g3, 3 * g3 + 3):
        for r in w2_reads(k, PK(k)): a(r)
    a("s_waitcnt lgkmcnt(0)")
    for k in range(3 * g3, 3 * g3 + 3): w2_dma(13 + k)
stamp("F")
a("""
v_and_b32 v7, 31, v0
v_lshlrev_b32 v7, 2, v7
s_lshl_b32 s10, s7, 7
s_add_u32 s27, s10, %d
s_mul_i32 s28, s3, %d
s_lshl_b32 s10, s7, 11
s_add_u32 s28, s28, s10
s_add_u32 s28, s28, %d
""", WS_FH, 22 * 65536, WS_HF)
poll(10, 7, "s27")
stamp("F")
HW = lambda k: 48 + 8 * (k % 8)
BT = lambda k: 32 + 8 * (k % 2)
A2 = lambda th, dh: [208, 224, 240, 112][2 * th + dh]
def h_load(k):
    a("buffer_load_dwordx4 %s, v26, s[44:47], s28 offen sc1\nbuffer_load_dwordx4 %s, v26, s[44:47], s28 offen offset:1024 sc1\ns_add_u32 s28, s28, 65536", vr(HW(k), 4), vr(HW(k) + 4, 4))
for k in range(8): h_load(k)
for k in range(22):
    infl = min(22, k + 8) - (k + 1)
    a("s_waitcnt vmcnt(%d) lgkmcnt(0)", 2 * infl)
    B = PK(k) if k < 9 else BT(k)
    nxt = w2_reads(k + 1, BT(k + 1)) if 9 <= k + 1 < 22 else []
    n = 0
    for th in range(2):
        for dh in range(2):
            a("v_mfma_f32_32x32x16_bf16 %s, %s, %s, %s", vr(A2(th, dh), 16), vr(HW(k) + 4 * th, 4), vr(B + 4 * dh, 4), "0" if k == 0 else vr(A2(th, dh), 16))
            if n < 2:
                for r in nxt[2 * n:2 * n + 2]: a(r)
            n += 1
    if k + 8 < 22: h_load(k + 8)
stamp("F")
a("""
v_lshlrev_b32 v7, 2, v0
s_lshr_b32 s10, s7, 4
s_lshl_b32 s10, s10, 11
s_lshl_b32 s11, s8, 8
s_add_u32 s27, s10, s11
s_add_u32 s27, s27, %d
v_lshlrev_b32 v16, 10, v5
v_lshl_or_b32 v16, v6, 4, v16
s_lshl_b32 s10, s7, 16
s_lshl_b32 s11, s3, 14
s_add_u32 s29, s10, s11
s_lshl_b32 s11, s8, 7
s_add_u32 s29, s29, s11
s_add_u32 s30, s29, 8192
buffer_load_dwordx4 v[32:35], v16, s[48:51], s29 offen
buffer_load_dwordx4 v[36:39], v16, s[48:51], s30 offen
v_lshlrev_b32 v17, 12, v5
v_lshl_or_b32 v17, v6, 4, v17     ; y voffset
s_lshl_b32 s10, s8, 18
s_lshl_b32 s11, s3, 16
s_add_u32 s31, s10, s11
s_lshl_b32 s11, s7, 7
s_add_u32 s31, s31, s11
s_add_u32 s31, s31, %d
s_add_u32 s33, s31, 32768
s_mov_b32 m0, s23
""", WS_FY, WS_YT)
RO = [0, 272, 640, 912]
for th in range(2):
    for dh in range(2):
        for i in range(4):
            for r in range(4):
                a("ds_write_addtid_b32 v%d offset:%d", A2(th, dh) + 4 * i + r, (4 * th + i) * 2448 + 1280 * dh + RO[r])
poll(10, 7, "s27")
stamp("F")
a("""
buffer_load_dwordx4 v[40:43], v17, s[44:47], s31 offen sc1
buffer_load_dwordx4 v[44:47], v17, s[44:47], s33 offen sc1
v_mul_u32_u24 v18, 144, v5
v_lshl_add_u32 v18, v6, 4, v18
s_lshl_b32 s10, s3, 4
s_add_u32 s10, s10, s24
v_add_u32 v18, s10, v18
v_lshrrev_b32 v19, 1, v6
v_mul_u32_u24 v19, 8208, v19
v_and_b32 v20, 1, v6
v_mul_u32_u24 v20, 1216, v20
v_add_u32 v19, v19, v20
v_lshl_add_u32 v19, v5, 1, v19
s_lshl_b32 s10, s3, 5
s_add_u32 s10, s10, %d
v_add_u32 v19, s10, v19
v_and_b32 v20, 1, v5
v_mul_u32_u24 v20, 272, v20
v_bfe_u32 v21, v5, 1, 1
v_mul_u32_u24 v21, 640, v21
v_add_u32 v20, v20, v21
v_lshl_add_u32 v20, v3, 7, v20
v_lshrrev_b32 v21, 2, v6
v_mul_u32_u24 v21, 1280, v21
v_add_u32 v20, v20, v21
v_lshl_add_u32 v20, v2, 5, v20
s_mul_i32 s10, s3, 4896
v_add_u32 v20, s10, v20
s_waitcnt vmcnt(1)
ds_write_b128 v18, v[40:43]
s_waitcnt vmcnt(0)
ds_write_b128 v18, v[44:47] offset:1216
s_waitcnt lgkmcnt(0)
s_barrier
""", F_HIGH)
stamp("F")
for rho in range(2):
    for e in range(8): a("ds_read_u16_d16_hi v%d, v19 offset:%d", 48 + 8 * rho + e, 144 * e + 16 * rho)
    for p in range(4):
        for hh in range(2): a("ds_read_b128 %s, v20 offset:%d", vr(128 + 32 * rho + 8 * p + 4 * hh, 4), FLW * p + 2448 * rho + 16 * hh)
    if rho == 0:
        for i in range(8): unpack(64 + 2 * i, 65 + 2 * i, 32 + i)
for rho in range(2):
    a("s_waitcnt lgkmcnt(%d)", 15 if rho == 0 else 0)
    if rho == 0: a("s_waitcnt lgkmcnt(15)")
    P = 128 + 32 * rho
    for e in range(8): a("v_and_b32 v%d, s13, v%d", 48 + 8 * rho + e, 48 + 8 * rho + e)
    for i in range(4):
        x = 64 + 8 * rho + 2 * i; y = 48 + 8 * rho + 2 * i; f = P + 2 * i
        a("v_pk_add_f32 %s, %s, %s", vr(x, 2), vr(x, 2), vr(y, 2))
        a("v_pk_add_f32 %s, %s, %s", vr(f, 2), vr(f, 2), vr(f + 8, 2))
        a("v_pk_add_f32 %s, %s, %s", vr(f + 16, 2), vr(f + 16, 2), vr(f + 24, 2))
        a("v_cvt_pk_bf16_f32 v%d, v%d, v%d", y, x, x + 1)
        a("v_pk_add_f32 %s, %s, %s", vr(f, 2), vr(f, 2), vr(f + 16, 2))
        unpack(x, x + 1, y)
        a("v_cvt_pk_bf16_f32 v%d, v%d, v%d", y + 1, f, f + 1)
        unpack(f, f + 1, y + 1)
        a("v_pk_add_f32 %s, %s, %s", vr(x, 2), vr(x, 2), vr(f, 2))
        a("v_cvt_pk_bf16_f32 v%d, v%d, v%d", 80 + 4 * rho + i, x, x + 1)
    a("buffer_store_dwordx4 %s, v16, s[60:63], %s offen", vr(80 + 4 * rho, 4), "s29" if rho == 0 else "s30")
stamp("F")
if DIAG:
    a("s_waitcnt vmcnt(0)"); stamp("F")
dump_stamps("F")
a("L_end:\ns_endpgm")

hdr = open("cdna_kernels/%s.s.ref" % NAME).read().split("; Override launch")[0]
src = hdr + """; Generated by a hand-written generator script (work/gen.py).
; @launch grid=(256,1,1) block=(512,1,1) lds=163840
.amdgcn_target "amdgcn-amd-amdhsa--gfx950"
.text
.globl %s_kernel
.p2align 8
.type %s_kernel,@function
%s_kernel:
""" % (NAME, NAME, NAME) + a.text() + """.section .rodata,"a"
.p2align 6
.amdhsa_kernel %s_kernel
  .amdhsa_next_free_vgpr 256
  .amdhsa_next_free_sgpr 102
  .amdhsa_accum_offset 256
  .amdhsa_group_segment_fixed_size 0
  .amdhsa_kernarg_size 120
  .amdhsa_user_sgpr_count 2
  .amdhsa_user_sgpr_kernarg_segment_ptr 1
  .amdhsa_system_sgpr_workgroup_id_x 1
.end_amdhsa_kernel
""" % NAME
out = [x for x in sys.argv[1:] if not x.startswith("--")]
open(out[0] if out else "cdna_kernels/%s.s" % NAME, "w").write(src)
```
